```python
import torch

def _softmax(x, axis=-1):
    return torch.softmax(x, dim=axis)
def _gelu(x):
    return torch.nn.functional.gelu(x, approximate="tanh")
def _silu(x):
    return torch.nn.functional.silu(x)
def _sigmoid(x):
    return torch.sigmoid(x)
def _layernorm(x, axis=-1, eps=1e-5):
    m = x.mean(dim=axis, keepdim=True)
    v = x.var(dim=axis, keepdim=True, unbiased=False)
    return (x - m) / torch.sqrt(v + eps)
def _scatter_add(tgt, idx, src, axis=0):
    return tgt.clone().index_add_(axis, idx, src)
def _segment_sum(src, seg, n):
    out = torch.zeros((n,) + src.shape[1:], dtype=src.dtype)
    return out.index_add_(0, seg, src)
def _pad(x, pw):
    flat = tuple(v for pair in reversed(pw) for v in pair)
    return torch.nn.functional.pad(x, flat)

kernel_name = 'standalone__window_attn_swin__vision'

def setup_inputs():

    _w = (lambda a: (lambda t: t.to(torch.bfloat16) if t.is_floating_point() else t)(torch.as_tensor(a)))
    H = W = 224
    C = 96
    ws = 7
    nh = 4
    shift = ws // 2
    coords = torch.stack(torch.meshgrid(torch.arange(ws), torch.arange(ws), indexing='ij'), 0).reshape(2, -1)
    rel = coords[:, :, None] - coords[:, None, :]
    rel[0] += ws - 1
    rel[1] += ws - 1
    rel[0] *= 2 * ws - 1
    rp_idx = rel.sum(0).to(torch.int64)
    img_mask = torch.zeros((1, H, W, 1), dtype=float)
    cnt = 0
    for hs in (slice(0, H - ws), slice(H - ws, H - shift), slice(H - shift, H)):
        for vs in (slice(0, W - ws), slice(W - ws, W - shift), slice(W - shift, W)):
            img_mask[:, hs, vs, :] = cnt
            cnt += 1
    mw = img_mask.reshape(1, H // ws, ws, W // ws, ws, 1).permute(0, 1, 3, 2, 4, 5).reshape(-1, ws * ws)
    am = mw[:, :, None] - mw[:, None, :]
    attn_mask = torch.where(am != 0, -100.0, 0.0).to(float)
    return {
        "x": _w((lambda *s: torch.randn(*s, dtype=torch.bfloat16) * 1.6)(1, H, W, C)),
        "wqkv": _w((lambda *s: torch.randn(*s, dtype=torch.bfloat16) * 1.6)(C, 3 * C) * 0.02),
        "wo": _w((lambda *s: torch.randn(*s, dtype=torch.bfloat16) * 0.05)(C, C) * 0.02),
        "rpb": _w((lambda *s: torch.randn(*s, dtype=torch.bfloat16) * 0.4)((2 * ws - 1) * (2 * ws - 1), nh)),
        "rp_idx": _w(rp_idx),
        "attn_mask": _w(attn_mask),
    }

def reference(x, wqkv, wo, rpb, rp_idx, attn_mask):
    B, H, W, C = x.shape
    N = rp_idx.shape[0]
    ws = int(round(N ** 0.5))
    nh = rpb.shape[-1]
    hd = C // nh
    shift = ws // 2
    xs = torch.roll(x, (-shift, -shift), (1, 2))
    nWh = H // ws
    nWw = W // ws
    xw = (lambda x, *d: x.permute(*d))(xs.reshape(B, nWh, ws, nWw, ws, C), 0, 1, 3, 2, 4, 5).reshape(B * nWh * nWw, N, C)
    qkv = (lambda x, *d: x.permute(*d))(torch.einsum('wnc,cd->wnd', xw, wqkv).reshape(-1, N, 3, nh, hd), 2, 0, 3, 1, 4)
    q, k, v = qkv[0], qkv[1], qkv[2]
    attn = torch.einsum('whid,whjd->whij', q, k) * (hd ** -0.5)
    bias = (lambda x, *d: x.permute(*d))(rpb[rp_idx.reshape(-1)].reshape(N, N, nh), 2, 0, 1)
    attn = attn + bias[None, :, :, :]
    attn = (attn.reshape(B, nWh * nWw, nh, N, N) + attn_mask[None, :, None, :, :]).reshape(-1, nh, N, N)
    attn = _softmax(attn, axis=-1)
    out = (lambda x, *d: x.permute(*d))(torch.einsum('whij,whjd->whid', attn, v), 0, 2, 1, 3).reshape(-1, N, C)
    out = torch.einsum('wnc,cd->wnd', out, wo)
    out = (lambda x, *d: x.permute(*d))(out.reshape(B, nWh, nWw, ws, ws, C), 0, 1, 3, 2, 4, 5).reshape(B, H, W, C)
    return torch.roll(out, (shift, shift), (1, 2))
```

```python
import heapq


def R(a, n=1):
    return list(range(a, a + n))


def vr(a, n=1):
    return f"v{a}" if n == 1 else f"v[{a}:{a+n-1}]"


class I:
    __slots__ = ("text", "kind", "rd", "wr", "meta")

    def __init__(self, text, kind, rd=(), wr=(), **meta):
        self.text = text
        self.kind = kind
        self.rd = list(rd)
        self.wr = list(wr)
        self.meta = meta


class Node:
    __slots__ = ("ins", "rd", "wr", "kind", "cost", "idx", "succ", "npred", "prio", "ready", "tag")

    def __init__(self, ins, kind=None, tag=None):
        self.ins = ins
        self.rd = set()
        self.wr = set()
        for i in ins:
            self.rd.update(i.rd)
            self.wr.update(i.wr)
        self.kind = kind or ins[0].kind
        self.cost = sum(COST.get(i.kind, 4) for i in ins)
        self.succ = []
        self.npred = 0
        self.prio = 0
        self.ready = 0
        self.tag = tag


COST = dict(valu=4, trans=8, perm=8, mfma=8, dsr=4, dsw=6, vld=4, vst=6, dma=6, salu=2, raw=2, br=2, label=0)


class Prog:
    def __init__(self):
        self.nodes = []

    def add(self, *ins, kind=None, tag=None):
        n = Node(list(ins), kind, tag)
        self.nodes.append(n)
        return n

    @staticmethod
    def valu(op, dst, *srcs, extra_rd=(), kind="valu", mods=""):
        txt = []
        rd = list(extra_rd)
        for s in srcs:
            if isinstance(s, int):
                txt.append(vr(s))
                rd.append(s)
            else:
                txt.append(s)
                if s.startswith("s[") or (s.startswith("s") and s[1:].isdigit()) or s == "vcc":
                    rd.append(s)
        return I(f"{op} {vr(dst)}, " + ", ".join(txt) + mods, kind, rd, [dst])

    @staticmethod
    def mfma32(D, A, B, C):
        rd = R(A, 4) + R(B, 4)
        if isinstance(C, int):
            rd += R(C, 16)
            ct = vr(C, 16)
        else:
            ct = C
        return I(f"v_mfma_f32_32x32x16_bf16 {vr(D,16)}, {vr(A,4)}, {vr(B,4)}, {ct}", "mfma", rd, R(D, 16),
                 D=D, C=C if isinstance(C, int) else None, A=A, B=B, n=16)

    @staticmethod
    def dsr(op, dst, n, addr, off, tok=()):
        o = f" offset:{off}" if off else ""
        assert 0 <= off < 65536, off
        return I(f"{op} {vr(dst,n)}, {vr(addr)}{o}", "dsr", [addr] + list(tok), R(dst, n))

    @staticmethod
    def dsw(op, addr, src, n, off, tok_rd=(), tok_wr=()):
        o = f" offset:{off}" if off else ""
        assert 0 <= off < 65536, off
        return I(f"{op} {vr(addr)}, {vr(src,n)}{o}", "dsw", [addr] + R(src, n) + list(tok_rd), list(tok_wr))

    @staticmethod
    def vld(op, dst, n, addr, srd, off=0, soff="0"):
        o = f" offset:{off}" if off else ""
        assert 0 <= off < 4096
        return I(f"{op} {vr(dst,n)}, {vr(addr)}, s[{srd}:{srd+3}], {soff} offen{o}", "vld", [addr], R(dst, n))

    @staticmethod
    def vst(op, src, n, addr, srd, off=0, soff="0"):
        o = f" offset:{off}" if off else ""
        assert 0 <= off < 4096
        return I(f"{op} {vr(src,n)}, {vr(addr)}, s[{srd}:{srd+3}], {soff} offen{o}", "vst", [addr] + R(src, n), [],
                 wide=(n >= 3), data=R(src, n))

    @staticmethod
    def salu(text, rd=(), wr=()):
        return I(text, "salu", rd, wr)

    @staticmethod
    def raw(text, rd=(), wr=(), **meta):
        return I(text, "raw", rd, wr, **meta)


LAT = dict(valu=6, trans=12, perm=12, dsr=140, dsw=20, vld=600, vst=4, dma=4, salu=4, raw=4, macro=8)


def edge_lat(p, c, typ, mf_pipe):
    pk = p.kind
    if typ == "raw":
        if pk == "mfma":
            pm = p.ins[0].meta
            if c.kind == "mfma" and c.ins[0].meta["C"] == pm["D"] and not (
                    set(R(pm["D"], 16)) & (set(R(c.ins[0].meta["A"], 4)) | set(R(c.ins[0].meta["B"], 4)))):
                return mf_pipe
            return 60
        if pk in ("valu", "trans", "perm") and c.kind == "mfma":
            return p.cost + 8
        return max(LAT.get(pk, 8), p.cost)
    if typ == "waw":
        if pk == "mfma":
            return 60 if c.kind != "mfma" else mf_pipe
        if pk == "dsr":
            return LAT["dsr"]
        return p.cost
    if pk == "mfma":
        return 36 if c.kind in ("valu", "trans", "perm", "macro") else 8
    return p.cost


def schedule(nodes, mf_pipe=32, vscale=1.0, verbose=False):
    n = len(nodes)
    lastw = {}
    readers = {}
    edges = [[] for _ in range(n)]
    npred = [0] * n
    for j, nd in enumerate(nodes):
        nd.idx = j
        deps = {}

        def dep(i, typ):
            l = edge_lat(nodes[i], nd, typ, mf_pipe)
            if deps.get(i, -1) < l:
                deps[i] = l

        for r in nd.rd:
            if r in lastw:
                dep(lastw[r], "raw")
        for r in nd.wr:
            if r in lastw:
                dep(lastw[r], "waw")
            for i in readers.get(r, ()):
                if i != j:
                    dep(i, "war")
        for i, l in deps.items():
            edges[i].append((j, l))
            npred[j] += 1
        for r in nd.rd:
            readers.setdefault(r, []).append(j)
        for r in nd.wr:
            lastw[r] = j
            readers[r] = []
    prio = [0] * n
    for j in range(n - 1, -1, -1):
        p = nodes[j].cost
        for (k, l) in edges[j]:
            p = max(p, l + prio[k])
        prio[j] = p
    ready_t = [0] * n
    avail = [j for j in range(n) if npred[j] == 0]
    t = 0
    pipe = 0
    order = []
    while avail:
        cand = [j for j in avail if ready_t[j] <= t]
        pick = None
        mf = [j for j in cand if nodes[j].kind == "mfma"]
        ot = [j for j in cand if nodes[j].kind != "mfma"]
        if mf and pipe <= t + 2:
            pick = max(mf, key=lambda j: (prio[j], -j))
        elif ot:
            pick = max(ot, key=lambda j: (prio[j], -j))
        if pick is None:
            nxt = min([ready_t[j] for j in avail if ready_t[j] > t] + ([pipe] if mf else []) + [1 << 60])
            assert nxt < (1 << 60)
            t = max(nxt, t + 1)
            continue
        avail.remove(pick)
        order.append(pick)
        nd = nodes[pick]
        start = t
        if nd.kind == "mfma":
            start = max(t, pipe)
            pipe = start + mf_pipe
            t = start + 8
        else:
            t = t + nd.cost * (vscale if nd.kind in ("valu", "trans", "perm") else 1)
        for (k, l) in edges[pick]:
            ready_t[k] = max(ready_t[k], start + l)
            npred[k] -= 1
            if npred[k] == 0:
                avail.append(k)
    assert len(order) == n
    if verbose:
        print(f"; sched: {n} nodes, est {t} cycles, crit path {max(prio)}")
    return [nodes[j] for j in order], t


class Emit:
    def __init__(self):
        self.out = []
        self.lg = []
        self.vm = []
        self.slot = 0
        self.w = {}
        self.cread = {}
        self.stdata = {}
        self.nnops = 0
        self.saved = []

    def line(self, t, slots=1):
        self.out.append("    " + t)
        self.slot += slots

    def comment(self, t):
        self.out.append("    ; " + t)

    def wait(self, vm=None, lg=None):
        parts = []
        if vm is not None:
            vm = min(vm, 63)
            if len(self.vm) > vm:
                parts.append(f"vmcnt({vm})")
                self.vm = self.vm[len(self.vm) - vm:] if vm else []
        if lg is not None:
            lg = min(lg, 15)
            if len(self.lg) > lg:
                parts.append(f"lgkmcnt({lg})")
                self.lg = self.lg[len(self.lg) - lg:] if lg else []
        if parts:
            self.line("s_waitcnt " + " ".join(parts))

    def need_wait(self, regs):
        regs = set(regs)
        vm = lg = None
        for k in range(len(self.vm) - 1, -1, -1):
            if self.vm[k] & regs:
                vm = len(self.vm) - 1 - k
                break
        for k in range(len(self.lg) - 1, -1, -1):
            if self.lg[k] & regs:
                lg = len(self.lg) - 1 - k
                break
        self.wait(vm, lg)

    def hazard(self, i):
        need = 0
        k = i.kind
        isvalu = k in ("valu", "trans", "perm")
        for r in i.rd:
            if r in self.w:
                pk, ps, pm = self.w[r]
                d = 0
                if pk == "mfma":
                    if k == "mfma":
                        m = i.meta
                        inAB = r in R(m["A"], 4) or r in R(m["B"], 4)
                        if inAB:
                            d = 12
                        elif m["C"] == pm["D"]:
                            d = 0
                        else:
                            d = 10
                    else:
                        d = 12
                elif pk in ("valu", "trans", "perm"):
                    if isinstance(r, str):
                        if isvalu:
                            d = 2
                        elif k in ("vld", "vst", "dma"):
                            d = 5
                        else:
                            d = 1
                    else:
                        if k == "mfma":
                            d = 2
                        elif k == "perm" or i.meta.get("dpp"):
                            d = 2
                        elif pk == "trans" and isvalu and k != "trans":
                            d = 1
                        elif i.meta.get("rfl"):
                            d = 1
                elif pk == "salu" and r == "m0" and k == "dma":
                    d = 1
                need = max(need, ps + 1 + d)
        for r in i.wr:
            if r in self.w:
                pk, ps, pm = self.w[r]
                if pk == "mfma":
                    if k == "mfma":
                        d = 0 if i.meta["D"] == pm["D"] else 10
                    else:
                        d = 12
                    need = max(need, ps + 1 + d)
            if isvalu and r in self.cread:
                need = max(need, self.cread[r] + 1 + 7)
            if r in self.stdata:
                need = max(need, self.stdata[r] + 1 + 2)
        while self.slot < need:
            d = min(need - self.slot, 16)
            self.line(f"s_nop {d-1}", d)
            self.nnops += d

    def emit(self, i):
        k = i.kind
        if k == "br":
            self.line(i.text)
            self.saved.append((list(self.lg), list(self.vm), self.slot, dict(self.w), dict(self.cread), dict(self.stdata)))
            return
        if k == "label":
            if i.meta.get("join"):
                self.wait(lg=0)
                self.line("s_nop 2", 3)
                self.lg, self.vm0, self.slot, self.w, self.cread, self.stdata = self.saved.pop()
                self.vm = self.vm0
            self.out.append(i.text)
            return
        if i.meta.get("drain"):
            self.wait(vm=0 if "vm" in i.meta["drain"] else None, lg=0 if "lg" in i.meta["drain"] else None)
        if "waitvm" in i.meta:
            self.wait(vm=i.meta["waitvm"])
        self.need_wait([r for r in i.rd + i.wr if isinstance(r, int)])
        self.hazard(i)
        s = self.slot
        self.line(i.text)
        for r in i.wr:
            self.w[r] = (k, s, i.meta)
        if k == "mfma" and i.meta["C"] is not None:
            for r in R(i.meta["C"], 16):
                self.cread[r] = s
        if k == "vst" and i.meta.get("wide"):
            for r in i.meta["data"]:
                self.stdata[r] = s
        if k == "dsr":
            self.lg.append(set(i.wr))
        elif k == "dsw":
            self.lg.append(set())
        elif k == "vld":
            self.vm.append(set(i.wr))
        elif k in ("vst", "dma"):
            self.vm.append(set())

    def fork(self):
        e = Emit()
        e.lg = list(self.lg)
        e.vm = list(self.vm)
        e.slot = self.slot
        e.w = dict(self.w)
        e.cread = dict(self.cread)
        e.stdata = dict(self.stdata)
        return e
```

```python
import math
import struct
import sys

sys.path.insert(0, "work")
from kgen import I, Node, Prog, Emit, schedule, R, vr

OPT = dict(xb="late", prio_a=0, prio_b=0, mf_pipe=32, vscale=1.0, out="standalone__window_attn_swin__vision.s",
           dbg=0)
for a in sys.argv[1:]:
    k, v = a.split("=")
    OPT[k] = type(OPT[k])(v)


def f32(x):
    return "0x%08x" % struct.unpack("<I", struct.pack("<f", x))[0]


SQ24 = math.sqrt(24.0)
CEXP = math.log2(math.e) / SQ24

W = 0
WO = 55296
TBL = 73728
EXC = 124928
RPB = 149504
FLG = 151552
LDS_SIZE = 151616

vXS, vWB0, vWB1, vWO, vTB, vTB8, vC, vEX = range(8)
XB = 8


def X(T, s):
    return XB + 24 * T + 4 * s


FR = [56, 60, 64, 68]


def Q(T):
    return 72 + 14 * T


def K(T):
    return 100 + 14 * T


def V(x):
    return 128 + 16 * x


BA, BB, BC = 160, 192, 224
PART = 8
vFA, vF, vSA, vONE = 20, 21, 22, 23
OUT = 24

sWAVE, sHP, sWI, sGRP, sWIN, sY0, sX0, sTY, sTX = 3, 48, 49, 50, 51, 52, 53, 54, 55
sT0, sT1, sT2, sT3 = 56, 57, 58, 59
sVM = 60
sFO, sFP = 62, 63
SRD_X, SRD_W, SRD_WO, SRD_RPB, SRD_IDX, SRD_OUT, SRD_D = 20, 24, 28, 32, 36, 44, 64
sONE = 68
sFLAG = 70
sC1, sC2 = 71, 72

P = Prog


def S(n):
    return f"s{n}"


def salu(e, text, rd=(), wr=()):
    e.emit(P.salu(text, rd, wr))


def valu(e, op, dst, *srcs, **kw):
    e.emit(P.valu(op, dst, *srcs, **kw))


def vcmp(e, op, sdst, a, b):
    txt, rd = [], []
    for s in (a, b):
        if isinstance(s, int):
            txt.append(vr(s))
            rd.append(s)
        else:
            txt.append(s)
            rd.append(s)
    pair = f"s[{sdst}:{sdst+1}]"
    e.emit(I(f"{op} {pair}, {txt[0]}, {txt[1]}", "valu", rd, [pair]))
    return pair


def dma(e, vaddr, srd, soff, off):
    o = f" offset:{off}" if off else ""
    e.emit(I(f"buffer_load_dwordx4 {vr(vaddr)}, s[{srd}:{srd+3}], {soff} offen{o} lds", "dma", [vaddr, "m0"], []))


def prologue_common(e):
    t = BC
    vL, vN, vH, vT0, vT1, vT2, vT3, vL16 = t, t + 1, t + 2, t + 3, t + 4, t + 5, t + 6, t + 7
    salu(e, "s_cmp_ge_u32 s2, 256")
    e.line("s_cbranch_scc1 L_end")
    salu(e, "s_load_dwordx16 s[4:19], s[0:1], 0")
    valu(e, "v_lshrrev_b32", vT0, "6", 0)
    valu(e, "v_and_b32", vL, "63", 0)
    e.emit(I(f"v_readfirstlane_b32 s{sWAVE}, {vr(vT0)}", "valu", [vT0], [S(sWAVE)], rfl=True))
    valu(e, "v_lshlrev_b32", vL16, "4", vL)
    valu(e, "v_and_b32", vN, "31", vL)
    valu(e, "v_lshrrev_b32", vH, "5", vL)
    salu(e, f"s_and_b32 s{sHP}, s{sWAVE}, 1", rd=[S(sWAVE)])
    salu(e, f"s_lshr_b32 s{sGRP}, s{sWAVE}, 2")
    salu(e, f"s_lshr_b32 s{sT0}, s{sWAVE}, 1")
    salu(e, f"s_and_b32 s{sWI}, s{sT0}, 1")
    salu(e, f"s_lshl_b32 s{sWIN}, s2, 2")
    salu(e, f"s_add_u32 s{sWIN}, s{sWIN}, s{sT0}")
    salu(e, f"s_mul_i32 s{sT1}, s{sT0}, 6144")
    salu(e, f"s_add_u32 s{sT1}, s{sT1}, {EXC}")
    valu(e, "v_add_u32", vEX, S(sT1), vL16)
    salu(e, f"s_lshr_b32 s{sT2}, s{sWIN}, 5")
    salu(e, f"s_and_b32 s{sT3}, s{sWIN}, 31")
    salu(e, f"s_cmp_eq_u32 s{sT2}, 31")
    salu(e, f"s_cselect_b32 s{sTY}, 4, 64")
    salu(e, f"s_cmp_eq_u32 s{sT3}, 31")
    salu(e, f"s_cselect_b32 s{sTX}, 4, 64")
    salu(e, f"s_mul_i32 s{sY0}, s{sT2}, 7")
    salu(e, f"s_add_u32 s{sY0}, s{sY0}, 3")
    salu(e, f"s_mul_i32 s{sX0}, s{sT3}, 7")
    salu(e, f"s_add_u32 s{sX0}, s{sX0}, 3")
    salu(e, f"s_mul_i32 s{sT1}, s{sWAVE}, 9216")
    salu(e, f"s_sub_u32 s{sT2}, s{sT1}, {WO}")
    salu(e, f"s_cmp_lt_u32 s{sWAVE}, 6")
    salu(e, f"s_cselect_b32 s{sT2}, s{sT1}, s{sT2}")
    salu(e, f"s_movk_i32 s{SRD_D+3}, 18432")
    salu(e, f"s_cselect_b32 s{SRD_D+2}, 55296, s{SRD_D+3}")
    salu(e, f"s_mov_b32 s{SRD_D+3}, 0x00020000")
    xa = [t + 8, t + 9]
    vTok, vRr, vCc, vY, vSh, vVal, vFull = t + 10, t + 11, t + 12, t + 13, t + 14, t + 15, t + 16
    salu(e, f"s_mov_b32 s{sC1}, 0x3f80")
    pairH = vcmp(e, "v_cmp_ne_u32", 74, "0", vH)
    valu(e, "v_mov_b32", vT1, "0xc3f5")
    valu(e, "v_mov_b32", vT2, "0x3dd1")
    valu(e, "v_cndmask_b32_e64", vT1, vT1, vT2, pairH)
    valu(e, "v_lshl_or_b32", vFull, vT1, "16", vT1)
    valu(e, "v_lshlrev_b32", vT3, "4", vH)
    for T in range(2):
        if T == 0:
            tok = vN
        else:
            valu(e, "v_add_u32", vTok, "32", vN)
            valu(e, "v_min_u32", vTok, "48", vTok)
            tok = vTok
        valu(e, "v_mul_u32_u24", vRr, "37", tok)
        valu(e, "v_lshrrev_b32", vRr, "8", vRr)
        valu(e, "v_mul_u32_u24", vCc, "7", vRr)
        valu(e, "v_sub_u32", vCc, tok, vCc)
        valu(e, "v_add_u32", vY, S(sY0), vRr)
        valu(e, "v_subrev_u32", vSh, "224", vY)
        valu(e, "v_min_u32", vY, vY, vSh)
        valu(e, "v_add_u32", vVal, S(sX0), vCc)
        valu(e, "v_subrev_u32", vSh, "224", vVal)
        valu(e, "v_min_u32", vVal, vVal, vSh)
        valu(e, "v_mul_u32_u24", vY, "0xe0", vY)
        valu(e, "v_add_u32", vY, vY, vVal)
        valu(e, "v_mul_u32_u24", vY, "0xc0", vY)
        valu(e, "v_add_u32", xa[T], vY, vT3)
        px = vcmp(e, "v_cmp_le_u32", 76, S(sTX), vCc)
        py = vcmp(e, "v_cmp_le_u32", 78, S(sTY), vRr)
        valu(e, "v_cndmask_b32_e64", vSh, "0", "16", px)
        valu(e, "v_lshlrev_b32_e64", vVal, vSh, S(sC1))
        valu(e, "v_cndmask_b32_e64", Q(T) + 6, vVal, "0", py)
        valu(e, "v_cndmask_b32_e64", Q(T) + 7, "0", vVal, py)
        valu(e, "v_lshlrev_b32", vVal, vSh, vT1)
        valu(e, "v_xor_b32", vVal, vVal, vFull)
        valu(e, "v_cndmask_b32_e64", K(T) + 6, vVal, vFull, py)
        valu(e, "v_cndmask_b32_e64", K(T) + 7, vFull, vVal, py)
    e.line("s_waitcnt lgkmcnt(0)")
    salu(e, f"s_cmp_lt_u32 s{sWAVE}, 6")
    salu(e, f"s_cselect_b32 s{SRD_D}, s6, s8")
    salu(e, f"s_cselect_b32 s{SRD_D+1}, s7, s9")
    for srd, p, n in ((SRD_X, 4, 9633792), (SRD_RPB, 10, 1352), (SRD_IDX, 12, 9604), (SRD_OUT, 16, 9633792)):
        salu(e, f"s_mov_b32 s{srd}, s{p}")
        salu(e, f"s_mov_b32 s{srd+1}, s{p+1}")
        salu(e, f"s_mov_b32 s{srd+2}, {n}")
        salu(e, f"s_mov_b32 s{srd+3}, 0x00020000")
    return dict(vL=vL, vN=vN, vH=vH, vL16=vL16, xa=xa, vH16=vT3, tmp=t + 17)


def wdma(e, c):
    for k in range(9):
        if k % 4 == 0:
            salu(e, f"s_add_u32 m0, s{sT1}, {k*1024}" if k else f"s_mov_b32 m0, s{sT1}", wr=["m0"])
            if k:
                salu(e, f"s_add_u32 s{sT2}, s{sT2}, 4096")
        dma(e, c["vL16"], SRD_D, S(sT2), (k % 4) * 1024)


def xloads(e, c):
    for s in range(6):
        for T in range(2):
            e.emit(P.vld("buffer_load_dwordx4", X(T, s), 4, c["xa"][T], SRD_X, 32 * s))


def lane_consts(e, c):
    vL, vN, vH, vL16 = c["vL"], c["vN"], c["vH"], c["vL16"]
    t = c["tmp"]
    a, b, d, f = t, t + 1, t + 2, t + 3
    valu(e, "v_bfe_u32", a, vL, "2", "2")
    valu(e, "v_and_b32", b, "3", vL)
    valu(e, "v_bfe_u32", d, vL, "4", "1")
    valu(e, "v_lshl_add_u32", f, vH, "3", a)
    valu(e, "v_mul_u32_u24", f, "0x240", f)
    valu(e, "v_lshl_add_u32", f, b, "3", f)
    valu(e, "v_lshl_add_u32", vWB0, d, "5", f)
    valu(e, "v_lshl_add_u32", f, d, "7", f)
    valu(e, "v_add_u32", vWB1, "64", f)
    valu(e, "v_lshl_add_u32", f, vH, "2", a)
    valu(e, "v_mul_u32_u24", f, "0xc0", f)
    valu(e, "v_lshl_add_u32", f, d, "5", f)
    valu(e, "v_and_b32", a, "1", b)
    valu(e, "v_lshrrev_b32", b, "1", b)
    valu(e, "v_lshl_add_u32", a, a, "1", b)
    valu(e, "v_lshl_add_u32", f, a, "3", f)
    valu(e, "v_add_u32", vWO, f"{WO}", f)
    valu(e, "v_add_u32", vTB, f"{TBL}", vL16)
    valu(e, "v_lshlrev_b32", a, "2", vL)
    valu(e, "v_add_u32", vTB8, f"{TBL+6144}", a)
    valu(e, "v_mov_b32", vC, f32(CEXP))
    salu(e, f"s_cmp_eq_u32 s{sHP}, 0")
    salu(e, f"s_cselect_b32 s{sT0}, 64, 17")
    salu(e, f"s_cselect_b64 s[74:75], 0, -1")
    valu(e, "v_cndmask_b32_e64", a, c["xa"][0], c["xa"][1], "s[74:75]")
    pv = vcmp(e, "v_cmp_gt_u32", 76, S(sT0), vN)
    valu(e, "v_mov_b32", b, "0x40000000")
    valu(e, "v_cndmask_b32_e64", vXS, b, a, pv)
    salu(e, f"s_mov_b32 s{sVM}, 0x00ffffff")
    salu(e, f"s_mov_b32 s{sVM+1}, 0x00ffffff")
    salu(e, f"s_mov_b32 s{sONE}, 0x3f803f80")
    salu(e, f"s_mov_b32 s{sONE+1}, 0x3f803f80")
    for i in range(0, 32, 2):
        e.emit(I(f"v_mov_b64 {vr(V(0)+i,2)}, s[{sONE}:{sONE+1}]", "valu", [], [V(0) + i, V(0) + i + 1]))
    salu(e, f"s_lshl_b32 s{sFO}, s{sWAVE}, 2")
    salu(e, f"s_add_u32 s{sFO}, s{sFO}, {FLG}")
    salu(e, f"s_xor_b32 s{sFP}, s{sFO}, 4")
    valu(e, "v_mov_b32", a, S(sFO))
    valu(e, "v_mov_b32", b, "0")
    e.emit(P.dsw("ds_write_b32", a, b, 1, 0))


def table_loads(e, c):
    vN, vH16 = c["vN"], c["vH16"]
    a = BA
    salu(e, f"s_lshl_b32 s{sT0}, s{sWI}, 5")
    valu(e, "v_add_u32", a, S(sT0), vN)
    valu(e, "v_min_u32", a, "48", a)
    valu(e, "v_mul_u32_u24", a, "0xc4", a)
    valu(e, "v_add_u32", a + 1, a, vH16)
    IDX = BB
    for sg in range(6):
        e.emit(P.vld("buffer_load_dwordx4", IDX + 4 * sg, 4, a + 1, SRD_IDX, 32 * sg))
    e.emit(P.vld("buffer_load_dword", IDX + 24, 1, a, SRD_IDX, 192))
    salu(e, f"s_mov_b32 m0, {RPB}", wr=["m0"])
    dma(e, c["vL16"], SRD_RPB, "0", 0)
    dma(e, c["vL16"], SRD_RPB, "0", 1024)


def table_build(e, c, nafter):
    IDX = BB
    salu(e, f"s_lshl_b32 s{sT0}, s{sHP}, 2")
    salu(e, f"s_add_u32 s{sT0}, s{sT0}, {RPB}")
    salu(e, f"s_lshl_b32 s{sT3}, s{sHP}, 2")
    salu(e, f"s_add_u32 s{sT3}, s{sT3}, s{sWI}")
    salu(e, f"s_mul_i32 s{sT3}, s{sT3}, 6400")
    vD, vD8, vSQ, vNEG = BA, BA + 1, BA + 2, BA + 3
    valu(e, "v_add_u32", vD, S(sT3), vTB)
    valu(e, "v_add_u32", vD8, S(sT3), vTB8)
    valu(e, "v_mov_b32", vSQ, f32(SQ24))
    ph = vcmp(e, "v_cmp_ne_u32", 74, "0", c["vH"])
    valu(e, "v_mov_b32", vNEG, f32(-1e30))
    valu(e, "v_cndmask_b32_e64", vNEG, "0", vNEG, ph)
    e.wait(vm=nafter)
    for i in range(25):
        valu(e, "v_lshl_add_u32", IDX + i, IDX + i, "3", S(sT0))
    LO = X(0, 0)
    if OPT["xb"] != "late":
        LO = BA + 4
    for i in range(25):
        e.emit(P.dsr("ds_read_b32", IDX + i, 1, IDX + i, 0))
    for i in range(25):
        valu(e, "v_lshlrev_b32", LO + i, "16", IDX + i)
        valu(e, "v_and_b32", IDX + i, "0xffff0000", IDX + i)
        if i < 24:
            valu(e, "v_mul_f32", LO + i, vSQ, LO + i)
            valu(e, "v_mul_f32", IDX + i, vSQ, IDX + i)
        else:
            valu(e, "v_fma_f32", LO + i, vSQ, LO + i, vNEG)
            valu(e, "v_fma_f32", IDX + i, vSQ, IDX + i, vNEG)
        if i % 4 == 3:
            sg = i // 4
            e.emit(P.dsw("ds_write_b128", vD, LO + 4 * sg, 4, sg * 1024))
            e.emit(P.dsw("ds_write_b128", vD, IDX + 4 * sg, 4, 12800 + sg * 1024))
    e.emit(P.dsw("ds_write_b32", vD8, LO + 24, 1, 0))
    e.emit(P.dsw("ds_write_b32", vD8, IDX + 24, 1, 12800))


def body(hp):
    p = Prog()
    fi = [0]

    def frag(base, off, rowstep):
        f = FR[fi[0] % len(FR)]
        fi[0] += 1
        p.add(P.dsr("ds_read_b64_tr_b16", f, 2, base, off))
        p.add(P.dsr("ds_read_b64_tr_b16", f + 2, 2, base, off + rowstep))
        return f

    def cvt(dst, a, b):
        return P.valu("v_cvt_pk_bf16_f32", dst, a, b)

    mts = [(vWB0, 96 * hp, BA), (vWB1, 96 * hp, BB), (vWB0, 192 + 96 * hp + 32, BC)]
    for mt, (base, coff, acc) in enumerate(mts):
        for s in range(6):
            f = frag(base, coff + 16 * s * 576, 4 * 576)
            for T in range(2):
                p.add(P.mfma32(acc + 16 * T, f, X(T, s), acc + 16 * T if s else "0"))
        for T in range(2):
            a = acc + 16 * T
            if mt == 0:
                dst = [Q(T) + i for i in (0, 1, 2, 3, 4, 5, 8, 9)]
            elif mt == 1:
                dst = [Q(T) + 10 + i for i in range(4)] + [K(T) + i for i in range(4)]
            else:
                dst = [K(T) + 4, K(T) + 5] + [K(T) + 8 + i for i in range(6)]
            for i in range(8):
                p.add(cvt(dst[i], a + 2 * i, a + 2 * i + 1))

    def vgemm(x, acc):
        for s in range(6):
            f = frag(vWB0, 384 + 96 * hp + 48 * x + 16 * s * 576, 4 * 576)
            for T in range(2):
                p.add(P.mfma32(acc + 16 * T, X(T, s), f, acc + 16 * T if s else "0"))
        on = P.salu(f"s_mov_b64 exec, s[{sVM}:{sVM+1}]")
        off = P.salu("s_mov_b64 exec, -1")
        p.add(on, *[cvt(V(x) + i, acc + 2 * i, acc + 2 * i + 1) for i in range(8)], off, kind="macro")
        p.add(on, *[cvt(V(x) + 8 + i, acc + 16 + 2 * i, acc + 17 + 2 * i) for i in range(5)], off, kind="macro")

    def unit(x, L, buf, late=False):
        H = 2 * hp + x
        tb = (2 * H + L) * 6400
        for sg in range(6):
            p.add(P.dsr("ds_read_b128", buf + 4 * sg, 4, vTB, tb + sg * 1024))
        p.add(P.dsr("ds_read_b32", buf + 24, 1, vTB8, tb))
        o = (0, 4) if x == 0 else (6, 10)
        for kt in range(2):
            for ks in range(2):
                m = P.mfma32(buf + 16 * kt, K(kt) + o[ks], Q(L) + o[ks], buf + 16 * kt)
                p.add(m)
        t = [buf + 25 + i for i in range(7)]
        for g in range(8):
            p.add(P.valu("v_max3_f32", t[g % 4] if g < 4 else t[g - 4], *( (buf + 3 * g, buf + 3 * g + 1, buf + 3 * g + 2) if g < 4 else (t[g - 4], buf + 12 + 2 * (g - 4), buf + 13 + 2 * (g - 4)))))
        mm = P.valu("v_max3_f32", t[0], t[0], buf + 20, buf + 21)
        if late:
            mm.wr.append("LATE")
        p.add(mm)
        p.add(P.valu("v_max3_f32", t[1], t[1], buf + 22, buf + 23))
        p.add(P.valu("v_max3_f32", t[2], t[2], t[3], buf + 24))
        p.add(P.valu("v_max3_f32", t[0], t[0], t[1], t[2]))
        p.add(P.valu("v_mov_b32", t[1], t[0]))
        p.add(I(f"v_permlane32_swap_b32 {vr(t[0])}, {vr(t[1])}", "perm", [t[0], t[1]], [t[0], t[1]]))
        p.add(P.valu("v_max_f32", t[0], t[0], t[1]))
        p.add(I(f"v_mul_f32_e64 {vr(t[0])}, -{vr(vC)}, {vr(t[0])}", "valu", [vC, t[0]], [t[0]]))
        for i in range(25):
            p.add(P.valu("v_fma_f32", buf + i, buf + i, vC, t[0]))
            p.add(P.valu("v_exp_f32", buf + i, buf + i, kind="trans"))
        for i in range(12):
            p.add(cvt(buf + i, buf + 2 * i, buf + 2 * i + 1))
        p.add(cvt(buf + 12, buf + 24, "0"))
        for i in (13, 14, 15):
            p.add(P.valu("v_mov_b32", buf + i, "0"))
        for kp in range(4):
            p.add(P.mfma32(buf + 16, V(x) + 4 * kp, buf + 4 * kp, buf + 16 if kp else "0"))
        p.add(P.valu("v_rcp_f32", buf, buf + 28, kind="trans"))
        for i in range(12):
            p.add(P.valu("v_mul_f32", buf + 16 + i, buf, buf + 16 + i))
        for i in range(6):
            p.add(cvt(Q(L) + 6 * x + i, buf + 16 + 2 * i, buf + 17 + 2 * i))

    L1, L0 = hp, 1 - hp
    vgemm(0, BA)
    unit(0, L0, BC)
    vgemm(1, BB)
    unit(1, L0, BA)
    for j in range(3):
        p.add(P.dsw("ds_write_b128", vEX, Q(L0) + 4 * j, 4, 3072 * hp + 1024 * j, tok_wr=["EXD"]))
    p.add(P.valu("v_mov_b32", vSA, S(sFO)))
    p.add(P.valu("v_mov_b32", vONE, "1"))
    p.add(P.dsw("ds_write_b32", vSA, vONE, 1, 0, tok_rd=["EXD"], tok_wr=["EXF"]))
    unit(0, L1, BB)
    unit(1, L1, BC, late=True)
    p.add(P.valu("v_mov_b32", vFA, S(sFP)))
    p.add(P.dsr("ds_read_b32", vF, 1, vFA, 0, tok=["EXF", "LATE"]),
          *[P.dsr("ds_read_b128", PART + 4 * j, 4, vEX, 3072 * (1 - hp) + 1024 * j) for j in range(3)], kind="dsr")
    p.add(I(f"v_readfirstlane_b32 s{sFLAG}, {vr(vF)}", "valu", [vF], [S(sFLAG)], rfl=True),
          P.salu(f"s_cmp_eq_u32 s{sFLAG}, 0", rd=[S(sFLAG)]),
          P.raw(f"s_cbranch_scc1 L_wait{hp}"),
          I(f"L_back{hp}:", "label", [], R(PART, 12)), kind="macro")
    accs = [BA, BA + 16, BB]
    first = [True] * 3
    for pair, src in ((1 - hp, PART), (hp, Q(L1))):
        for ks in range(3):
            for u in range(3):
                f = frag(vWO, (48 * pair + 16 * ks) * 192 + 64 * u, 8 * 192)
                p.add(P.mfma32(accs[u], f, src + 4 * ks, "0" if first[u] else accs[u]))
                first[u] = False
    for u in range(3):
        for y in range(2):
            d = OUT + 8 * u + 4 * y
            for i in range(4):
                p.add(cvt(d + i, accs[u] + 8 * y + 2 * i, accs[u] + 8 * y + 2 * i + 1))
            p.add(P.vst("buffer_store_dwordx4", d, 4, vXS, SRD_OUT, 64 * u + 32 * y))
    return p


def slow_path(e, hp):
    o = []
    o.append(f"L_wait{hp}:")
    o.append("    s_sleep 1")
    o.append(f"    ds_read_b32 {vr(vF)}, {vr(vFA)}")
    for j in range(3):
        off = 3072 * (1 - hp) + 1024 * j
        o.append(f"    ds_read_b128 {vr(PART+4*j,4)}, {vr(vEX)}" + (f" offset:{off}" if off else ""))
    o.append("    s_waitcnt lgkmcnt(0)")
    o.append(f"    v_readfirstlane_b32 s{sFLAG}, {vr(vF)}")
    o.append("    s_nop 1")
    o.append(f"    s_cmp_eq_u32 s{sFLAG}, 0")
    o.append(f"    s_cbranch_scc1 L_wait{hp}")
    o.append(f"    s_branch L_back{hp}")
    return o


def main():
    out = []
    e = Emit()
    c = prologue_common(e)
    salu(e, f"s_cmp_eq_u32 s{sGRP}, 0")
    e.line("s_cbranch_scc0 L_pb")
    ea = e.fork()
    wdma(ea, c)
    xloads(ea, c)
    lane_consts(ea, c)
    ea.wait(vm=12, lg=0)
    if OPT["prio_a"]:
        ea.line(f"s_setprio {OPT['prio_a']}")
    ea.line("s_branch L_join")
    eb = e.fork()
    eb.out.append("L_pb:")
    table_loads(eb, c)
    wdma(eb, c)
    na = 9
    if OPT["xb"] == "early":
        xloads(eb, c)
        na += 12
    lane_consts(eb, c)
    if OPT["xb"] == "mid":
        eb.wait(vm=na)
        xloads(eb, c)
        na = 12 + 9
    table_build(eb, c, na)
    if OPT["xb"] == "late":
        eb.wait(lg=0)
        xloads(eb, c)
    eb.wait(vm=12, lg=0)
    if OPT["prio_b"]:
        eb.line(f"s_setprio {OPT['prio_b']}")
    out += e.out + ea.out + eb.out
    out.append("L_join:")
    out.append("    s_barrier")
    out.append(f"    s_cmp_eq_u32 s{sHP}, 0")
    out.append("    s_cbranch_scc0 L_body1")
    tail = []
    for hp in range(2):
        p = body(hp)
        order, est = schedule(p.nodes, OPT["mf_pipe"], OPT["vscale"], verbose=True)
        eh = Emit()
        eh.vm = [set(R(X(T, s), 4)) for s in range(6) for T in range(2)]
        eh.slot = 100
        if hp:
            eh.out.append("L_body1:")
        for nd in order:
            for i in nd.ins:
                eh.emit(i)
        eh.line("s_endpgm")
        out += eh.out
        tail += slow_path(eh, hp)
    out += tail
    out.append("L_end:")

    hdr = open("standalone__window_attn_swin__vision.s.ref").read().split("\n")
    head = []
    for l in hdr:
        if l.startswith("; @launch"):
            l = f"; @launch grid=(256,1,1) block=(512,1,1) lds={LDS_SIZE}"
        head.append(l)
        if l.startswith("standalone__window_attn_swin__vision_kernel:"):
            break
    foot = hdr[hdr.index("s_endpgm"):]
    txt = "\n".join(head + out + foot)
    open(OPT["out"], "w").write(txt)


main()
```

```python
import math
import struct
import sys

sys.path.insert(0, "work")
from kgen import I, Node, Prog, Emit, schedule, R, vr

OPT = dict(xb="late", prio_a=0, prio_b=0, mf_pipe=32, vscale=1.0, out="standalone__window_attn_swin__vision.s",
           dbg=0, prof=0, exp='')
for a in sys.argv[1:]:
    k, v = a.split("=")
    OPT[k] = type(OPT[k])(v)


def f32(x):
    return "0x%08x" % struct.unpack("<I", struct.pack("<f", x))[0]


SQ24 = math.sqrt(24.0)
CEXP = math.log2(math.e) / SQ24

W = 0
WO = 55296
TBL = 73728
EXC = 124928
RPB = 149504
FLG = 151552
LDS_SIZE = 151616

vXS, vWB0, vWB1, vWO, vTB, vTB8, vC, vEX = range(8)
XB = 8


def X(T, s):
    return XB + 24 * T + 4 * s


FR = [56, 60, 64, 68]


def Q(T):
    return 72 + 14 * T


def K(T):
    return 100 + 14 * T


def V(x):
    return 128 + 16 * x


BA, BB, BC = 160, 192, 224
PART = 8
vFA, vF, vSA, vONE = 20, 21, 22, 23
OUT = 24

sWAVE, sHP, sWI, sGRP, sWIN, sY0, sX0, sTY, sTX = 3, 48, 49, 50, 51, 52, 53, 54, 55
sT0, sT1, sT2, sT3 = 56, 57, 58, 59
sVM = 60
sFO, sFP = 62, 63
SRD_X, SRD_W, SRD_WO, SRD_RPB, SRD_IDX, SRD_OUT, SRD_D = 20, 24, 28, 32, 36, 44, 64
sONE = 68
sFLAG = 70
sC1, sC2 = 71, 72

P = Prog


def S(n):
    return f"s{n}"


def salu(e, text, rd=(), wr=()):
    e.emit(P.salu(text, rd, wr))


def valu(e, op, dst, *srcs, **kw):
    e.emit(P.valu(op, dst, *srcs, **kw))


def vcmp(e, op, sdst, a, b):
    txt, rd = [], []
    for s in (a, b):
        if isinstance(s, int):
            txt.append(vr(s))
            rd.append(s)
        else:
            txt.append(s)
            rd.append(s)
    pair = f"s[{sdst}:{sdst+1}]"
    e.emit(I(f"{op} {pair}, {txt[0]}, {txt[1]}", "valu", rd, [pair]))
    return pair


def dma(e, vaddr, srd, soff, off):
    o = f" offset:{off}" if off else ""
    e.emit(I(f"buffer_load_dwordx4 {vr(vaddr)}, s[{srd}:{srd+3}], {soff} offen{o} lds", "dma", [vaddr, "m0"], []))


def prologue_common(e):
    t = BC
    vL, vN, vH, vT0, vT1, vT2, vT3, vL16 = t, t + 1, t + 2, t + 3, t + 4, t + 5, t + 6, t + 7
    salu(e, "s_cmp_ge_u32 s2, 256")
    e.line("s_cbranch_scc1 L_end")
    salu(e, "s_load_dwordx16 s[4:19], s[0:1], 0")
    valu(e, "v_lshrrev_b32", vT0, "6", 0)
    valu(e, "v_and_b32", vL, "63", 0)
    e.emit(I(f"v_readfirstlane_b32 s{sWAVE}, {vr(vT0)}", "valu", [vT0], [S(sWAVE)], rfl=True))
    valu(e, "v_lshlrev_b32", vL16, "4", vL)
    valu(e, "v_and_b32", vN, "31", vL)
    valu(e, "v_lshrrev_b32", vH, "5", vL)
    salu(e, f"s_and_b32 s{sHP}, s{sWAVE}, 1", rd=[S(sWAVE)])
    salu(e, f"s_lshr_b32 s{sGRP}, s{sWAVE}, 2")
    salu(e, f"s_lshr_b32 s{sT0}, s{sWAVE}, 1")
    salu(e, f"s_and_b32 s{sWI}, s{sT0}, 1")
    salu(e, f"s_lshl_b32 s{sWIN}, s2, 2")
    salu(e, f"s_add_u32 s{sWIN}, s{sWIN}, s{sT0}")
    salu(e, f"s_mul_i32 s{sT1}, s{sT0}, 6144")
    salu(e, f"s_add_u32 s{sT1}, s{sT1}, {EXC}")
    valu(e, "v_add_u32", vEX, S(sT1), vL16)
    salu(e, f"s_lshr_b32 s{sT2}, s{sWIN}, 5")
    salu(e, f"s_and_b32 s{sT3}, s{sWIN}, 31")
    salu(e, f"s_cmp_eq_u32 s{sT2}, 31")
    salu(e, f"s_cselect_b32 s{sTY}, 4, 64")
    salu(e, f"s_cmp_eq_u32 s{sT3}, 31")
    salu(e, f"s_cselect_b32 s{sTX}, 4, 64")
    salu(e, f"s_mul_i32 s{sY0}, s{sT2}, 7")
    salu(e, f"s_add_u32 s{sY0}, s{sY0}, 3")
    salu(e, f"s_mul_i32 s{sX0}, s{sT3}, 7")
    salu(e, f"s_add_u32 s{sX0}, s{sX0}, 3")
    salu(e, f"s_mul_i32 s{sT1}, s{sWAVE}, 9216")
    salu(e, f"s_sub_u32 s{sT2}, s{sT1}, {WO}")
    salu(e, f"s_cmp_lt_u32 s{sWAVE}, 6")
    salu(e, f"s_cselect_b32 s{sT2}, s{sT1}, s{sT2}")
    salu(e, f"s_movk_i32 s{SRD_D+3}, 18432")
    salu(e, f"s_cselect_b32 s{SRD_D+2}, 55296, s{SRD_D+3}")
    salu(e, f"s_mov_b32 s{SRD_D+3}, 0x00020000")
    xa = [t + 8, t + 9]
    vTok, vRr, vCc, vY, vSh, vVal, vFull = t + 10, t + 11, t + 12, t + 13, t + 14, t + 15, t + 16
    salu(e, f"s_mov_b32 s{sC1}, 0x3f80")
    pairH = vcmp(e, "v_cmp_ne_u32", 74, "0", vH)
    valu(e, "v_mov_b32", vT1, "0xc3f5")
    valu(e, "v_mov_b32", vT2, "0x3dd1")
    valu(e, "v_cndmask_b32_e64", vT1, vT1, vT2, pairH)
    valu(e, "v_lshl_or_b32", vFull, vT1, "16", vT1)
    valu(e, "v_lshlrev_b32", vT3, "4", vH)
    for T in range(2):
        if T == 0:
            tok = vN
        else:
            valu(e, "v_add_u32", vTok, "32", vN)
            valu(e, "v_min_u32", vTok, "48", vTok)
            tok = vTok
        valu(e, "v_mul_u32_u24", vRr, "37", tok)
        valu(e, "v_lshrrev_b32", vRr, "8", vRr)
        valu(e, "v_mul_u32_u24", vCc, "7", vRr)
        valu(e, "v_sub_u32", vCc, tok, vCc)
        valu(e, "v_add_u32", vY, S(sY0), vRr)
        valu(e, "v_subrev_u32", vSh, "224", vY)
        valu(e, "v_min_u32", vY, vY, vSh)
        valu(e, "v_add_u32", vVal, S(sX0), vCc)
        valu(e, "v_subrev_u32", vSh, "224", vVal)
        valu(e, "v_min_u32", vVal, vVal, vSh)
        valu(e, "v_mul_u32_u24", vY, "0xe0", vY)
        valu(e, "v_add_u32", vY, vY, vVal)
        valu(e, "v_mul_u32_u24", vY, "0xc0", vY)
        valu(e, "v_add_u32", xa[T], vY, vT3)
        px = vcmp(e, "v_cmp_le_u32", 76, S(sTX), vCc)
        py = vcmp(e, "v_cmp_le_u32", 78, S(sTY), vRr)
        valu(e, "v_cndmask_b32_e64", vSh, "0", "16", px)
        valu(e, "v_lshlrev_b32_e64", vVal, vSh, S(sC1))
        valu(e, "v_cndmask_b32_e64", Q(T) + 6, vVal, "0", py)
        valu(e, "v_cndmask_b32_e64", Q(T) + 7, "0", vVal, py)
        valu(e, "v_lshlrev_b32", vVal, vSh, vT1)
        valu(e, "v_xor_b32", vVal, vVal, vFull)
        valu(e, "v_cndmask_b32_e64", K(T) + 6, vVal, vFull, py)
        valu(e, "v_cndmask_b32_e64", K(T) + 7, vFull, vVal, py)
    e.line("s_waitcnt lgkmcnt(0)")
    e.out.append(";@9")
    salu(e, f"s_cmp_lt_u32 s{sWAVE}, 6")
    salu(e, f"s_cselect_b32 s{SRD_D}, s6, s8")
    salu(e, f"s_cselect_b32 s{SRD_D+1}, s7, s9")
    for srd, p, n in ((SRD_X, 4, 9633792), (SRD_RPB, 10, 1352), (SRD_OUT, 16, 9633792)):
        salu(e, f"s_mov_b32 s{srd}, s{p}")
        salu(e, f"s_mov_b32 s{srd+1}, s{p+1}")
        salu(e, f"s_mov_b32 s{srd+2}, {n}")
        salu(e, f"s_mov_b32 s{srd+3}, 0x00020000")
    return dict(vL=vL, vN=vN, vH=vH, vL16=vL16, xa=xa, vH16=vT3, tmp=t + 17)


def wdma(e, c):
    for k in range(9):
        if "noW" in OPT["exp"]:
            e.vm.append(set())
            continue
        if k % 4 == 0:
            salu(e, f"s_add_u32 m0, s{sT1}, {k*1024}" if k else f"s_mov_b32 m0, s{sT1}", wr=["m0"])
            if k:
                salu(e, f"s_add_u32 s{sT2}, s{sT2}, 4096")
        dma(e, c["vL16"], SRD_D, S(sT2), (k % 4) * 1024)


def xloads(e, c):
    for s in range(6):
        for T in range(2):
            if "noX" in OPT["exp"]:
                e.vm.append(set())
                continue
            e.emit(P.vld("buffer_load_dwordx4", X(T, s), 4, c["xa"][T], SRD_X, 32 * s))


def lane_consts(e, c):
    vL, vN, vH, vL16 = c["vL"], c["vN"], c["vH"], c["vL16"]
    t = c["tmp"]
    a, b, d, f = t, t + 1, t + 2, t + 3
    valu(e, "v_bfe_u32", a, vL, "2", "2")
    valu(e, "v_and_b32", b, "3", vL)
    valu(e, "v_bfe_u32", d, vL, "4", "1")
    valu(e, "v_lshl_add_u32", f, vH, "3", a)
    valu(e, "v_mul_u32_u24", f, "0x240", f)
    valu(e, "v_lshl_add_u32", f, b, "3", f)
    valu(e, "v_lshl_add_u32", vWB0, d, "5", f)
    valu(e, "v_lshl_add_u32", f, d, "7", f)
    valu(e, "v_add_u32", vWB1, "64", f)
    valu(e, "v_lshl_add_u32", f, vH, "2", a)
    valu(e, "v_mul_u32_u24", f, "0xc0", f)
    valu(e, "v_lshl_add_u32", f, d, "5", f)
    valu(e, "v_and_b32", a, "1", b)
    valu(e, "v_lshrrev_b32", b, "1", b)
    valu(e, "v_lshl_add_u32", a, a, "1", b)
    valu(e, "v_lshl_add_u32", f, a, "3", f)
    valu(e, "v_add_u32", vWO, f"{WO}", f)
    valu(e, "v_add_u32", vTB, f"{TBL}", vL16)
    valu(e, "v_lshlrev_b32", a, "2", vL)
    valu(e, "v_add_u32", vTB8, f"{TBL+6144}", a)
    valu(e, "v_mov_b32", vC, f32(CEXP))
    salu(e, f"s_cmp_eq_u32 s{sHP}, 0")
    salu(e, f"s_cselect_b32 s{sT0}, 64, 17")
    salu(e, f"s_cselect_b64 s[74:75], 0, -1")
    valu(e, "v_cndmask_b32_e64", a, c["xa"][0], c["xa"][1], "s[74:75]")
    pv = vcmp(e, "v_cmp_gt_u32", 76, S(sT0), vN)
    valu(e, "v_mov_b32", b, "0x40000000")
    valu(e, "v_cndmask_b32_e64", vXS, b, a, pv)
    salu(e, f"s_mov_b32 s{sVM}, 0x00ffffff")
    salu(e, f"s_mov_b32 s{sVM+1}, 0x00ffffff")
    salu(e, f"s_mov_b32 s{sONE}, 0x3f803f80")
    salu(e, f"s_mov_b32 s{sONE+1}, 0x3f803f80")
    for i in range(0, 32, 2):
        e.emit(I(f"v_mov_b64 {vr(V(0)+i,2)}, s[{sONE}:{sONE+1}]", "valu", [], [V(0) + i, V(0) + i + 1]))
    salu(e, f"s_lshl_b32 s{sFO}, s{sWAVE}, 2")
    salu(e, f"s_add_u32 s{sFO}, s{sFO}, {FLG}")
    salu(e, f"s_xor_b32 s{sFP}, s{sFO}, 4")
    valu(e, "v_mov_b32", a, S(sFO))
    valu(e, "v_mov_b32", b, "0")
    e.emit(P.dsw("ds_write_b32", a, b, 1, 0))


def table_loads(e, c):
    salu(e, f"s_mov_b32 m0, {RPB}", wr=["m0"])
    dma(e, c["vL16"], SRD_RPB, "0", 0)
    dma(e, c["vL16"], SRD_RPB, "0", 1024)


def koff(j):
    return ((j // 7) * 13 + j % 7) * 8


def table_build(e, c, nafter):
    HI = BB
    KMAX = koff(48)
    vD, vD8, vSQ, vNEG, vA, vB, vCc, vT = BA, BA + 1, BA + 2, BA + 3, BA + 30, BA + 31, HI + 30, HI + 31
    salu(e, f"s_lshl_b32 s{sT0}, s{sWI}, 5")
    valu(e, "v_add_u32", vT, S(sT0), c["vN"])
    valu(e, "v_min_u32", vT, "48", vT)
    valu(e, "v_mul_u32_u24", vA, "37", vT)
    valu(e, "v_lshrrev_b32", vA, "8", vA)
    valu(e, "v_mul_u32_u24", vA, "6", vA)
    valu(e, "v_add_u32", vT, vT, vA)
    salu(e, f"s_lshl_b32 s{sT0}, s{sHP}, 2")
    salu(e, f"s_add_u32 s{sT0}, s{sT0}, {RPB + 84 * 8 - KMAX}")
    valu(e, "v_lshl_add_u32", vCc, vT, "3", S(sT0))
    valu(e, "v_mul_u32_u24", vT, "32", c["vH"])
    valu(e, "v_sub_u32", vA, vCc, vT)
    valu(e, "v_mul_u32_u24", vT, "0x50", c["vH"])
    valu(e, "v_sub_u32", vB, vCc, vT)
    salu(e, f"s_lshl_b32 s{sT3}, s{sHP}, 2")
    salu(e, f"s_add_u32 s{sT3}, s{sT3}, s{sWI}")
    salu(e, f"s_mul_i32 s{sT3}, s{sT3}, 6400")
    valu(e, "v_add_u32", vD, S(sT3), vTB)
    valu(e, "v_add_u32", vD8, S(sT3), vTB8)
    valu(e, "v_mov_b32", vSQ, f32(SQ24))
    ph = vcmp(e, "v_cmp_ne_u32", 74, "0", c["vH"])
    valu(e, "v_mov_b32", vNEG, f32(-1e30))
    valu(e, "v_cndmask_b32_e64", vNEG, "0", vNEG, ph)
    e.out.append(";@10")
    e.wait(vm=nafter)
    e.out.append(";@11")
    LO = BA + 4
    for i in range(25):
        j0 = 8 * (i // 4) + i % 4
        if i == 24:
            base = vCc
        else:
            d = koff(j0 + 4) - koff(j0)
            assert d in (32, 80)
            base = vA if d == 32 else vB
        e.emit(P.dsr("ds_read_b32", HI + i, 1, base, KMAX - koff(j0)))
    for i in range(25):
        valu(e, "v_lshlrev_b32", LO + i, "16", HI + i)
        valu(e, "v_and_b32", HI + i, "0xffff0000", HI + i)
        if i < 24:
            valu(e, "v_mul_f32", LO + i, vSQ, LO + i)
            valu(e, "v_mul_f32", HI + i, vSQ, HI + i)
        else:
            valu(e, "v_fma_f32", LO + i, vSQ, LO + i, vNEG)
            valu(e, "v_fma_f32", HI + i, vSQ, HI + i, vNEG)
        if i % 4 == 3:
            sg = i // 4
            e.emit(P.dsw("ds_write_b128", vD, LO + 4 * sg, 4, sg * 1024))
            e.emit(P.dsw("ds_write_b128", vD, HI + 4 * sg, 4, 12800 + sg * 1024))
    e.emit(P.dsw("ds_write_b32", vD8, LO + 24, 1, 0))
    e.emit(P.dsw("ds_write_b32", vD8, HI + 24, 1, 12800))


def body(hp):
    p = Prog()
    fi = [0]

    def frag(base, off, rowstep):
        f = FR[fi[0] % len(FR)]
        fi[0] += 1
        p.add(P.dsr("ds_read_b64_tr_b16", f, 2, base, off))
        p.add(P.dsr("ds_read_b64_tr_b16", f + 2, 2, base, off + rowstep))
        return f

    def cvt(dst, a, b):
        return P.valu("v_cvt_pk_bf16_f32", dst, a, b)

    mts = [(vWB0, 96 * hp, BA), (vWB1, 96 * hp, BB), (vWB0, 192 + 96 * hp + 32, BC)]
    for mt, (base, coff, acc) in enumerate(mts):
        for s in range(6):
            f = frag(base, coff + 16 * s * 576, 4 * 576)
            for T in range(2):
                p.add(P.mfma32(acc + 16 * T, f, X(T, s), acc + 16 * T if s else "0"))
        for T in range(2):
            a = acc + 16 * T
            if mt == 0:
                dst = [Q(T) + i for i in (0, 1, 2, 3, 4, 5, 8, 9)]
            elif mt == 1:
                dst = [Q(T) + 10 + i for i in range(4)] + [K(T) + i for i in range(4)]
            else:
                dst = [K(T) + 4, K(T) + 5] + [K(T) + 8 + i for i in range(6)]
            for i in range(8):
                p.add(cvt(dst[i], a + 2 * i, a + 2 * i + 1))

    def vgemm(x, acc):
        for s in range(6):
            f = frag(vWB0, 384 + 96 * hp + 48 * x + 16 * s * 576, 4 * 576)
            for T in range(2):
                p.add(P.mfma32(acc + 16 * T, X(T, s), f, acc + 16 * T if s else "0"))
        on = P.salu(f"s_mov_b64 exec, s[{sVM}:{sVM+1}]")
        off = P.salu("s_mov_b64 exec, -1")
        p.add(on, *[cvt(V(x) + i, acc + 2 * i, acc + 2 * i + 1) for i in range(8)], off, kind="macro")
        p.add(on, *[cvt(V(x) + 8 + i, acc + 16 + 2 * i, acc + 17 + 2 * i) for i in range(5)], off, kind="macro")

    def unit(x, L, buf, late=False):
        H = 2 * hp + x
        tb = (2 * H + L) * 6400
        for sg in range(6):
            p.add(P.dsr("ds_read_b128", buf + 4 * sg, 4, vTB, tb + sg * 1024))
        p.add(P.dsr("ds_read_b32", buf + 24, 1, vTB8, tb))
        o = (0, 4) if x == 0 else (6, 10)
        for kt in range(2):
            for ks in range(2):
                m = P.mfma32(buf + 16 * kt, K(kt) + o[ks], Q(L) + o[ks], buf + 16 * kt)
                p.add(m)
        t = [buf + 25 + i for i in range(7)]
        for g in range(8):
            p.add(P.valu("v_max3_f32", t[g % 4] if g < 4 else t[g - 4], *( (buf + 3 * g, buf + 3 * g + 1, buf + 3 * g + 2) if g < 4 else (t[g - 4], buf + 12 + 2 * (g - 4), buf + 13 + 2 * (g - 4)))))
        mm = P.valu("v_max3_f32", t[0], t[0], buf + 20, buf + 21)
        if late:
            mm.wr.append("LATE")
        p.add(mm)
        p.add(P.valu("v_max3_f32", t[1], t[1], buf + 22, buf + 23))
        p.add(P.valu("v_max3_f32", t[2], t[2], t[3], buf + 24))
        p.add(P.valu("v_max3_f32", t[0], t[0], t[1], t[2]))
        p.add(P.valu("v_mov_b32", t[1], t[0]))
        p.add(I(f"v_permlane32_swap_b32 {vr(t[0])}, {vr(t[1])}", "perm", [t[0], t[1]], [t[0], t[1]]))
        p.add(P.valu("v_max_f32", t[0], t[0], t[1]))
        p.add(I(f"v_mul_f32_e64 {vr(t[0])}, -{vr(vC)}, {vr(t[0])}", "valu", [vC, t[0]], [t[0]]))
        for i in range(25):
            p.add(P.valu("v_fma_f32", buf + i, buf + i, vC, t[0]))
            p.add(P.valu("v_exp_f32", buf + i, buf + i, kind="trans"))
        for i in range(12):
            p.add(cvt(buf + i, buf + 2 * i, buf + 2 * i + 1))
        p.add(cvt(buf + 12, buf + 24, "0"))
        for i in (13, 14, 15):
            p.add(P.valu("v_mov_b32", buf + i, "0"))
        for kp in range(4):
            p.add(P.mfma32(buf + 16, V(x) + 4 * kp, buf + 4 * kp, buf + 16 if kp else "0"))
        p.add(P.valu("v_rcp_f32", buf, buf + 28, kind="trans"))
        for i in range(12):
            p.add(P.valu("v_mul_f32", buf + 16 + i, buf, buf + 16 + i))
        for i in range(6):
            p.add(cvt(Q(L) + 6 * x + i, buf + 16 + 2 * i, buf + 17 + 2 * i))

    L1, L0 = hp, 1 - hp
    vgemm(0, BA)
    unit(0, L0, BC)
    vgemm(1, BB)
    unit(1, L0, BA)
    for j in range(3):
        p.add(P.dsw("ds_write_b128", vEX, Q(L0) + 4 * j, 4, 3072 * hp + 1024 * j, tok_wr=["EXD"]))
    p.add(P.valu("v_mov_b32", vSA, S(sFO)))
    p.add(P.valu("v_mov_b32", vONE, "1"))
    p.add(P.dsw("ds_write_b32", vSA, vONE, 1, 0, tok_rd=["EXD"], tok_wr=["EXF"]))
    unit(0, L1, BB)
    unit(1, L1, BC, late=True)
    p.add(P.valu("v_mov_b32", vFA, S(sFP)))
    p.add(P.dsr("ds_read_b32", vF, 1, vFA, 0, tok=["EXF", "LATE"]),
          *[P.dsr("ds_read_b128", PART + 4 * j, 4, vEX, 3072 * (1 - hp) + 1024 * j) for j in range(3)], kind="dsr")
    p.add(I(f"v_readfirstlane_b32 s{sFLAG}, {vr(vF)}", "valu", [vF], [S(sFLAG)], rfl=True),
          P.salu(f"s_cmp_eq_u32 s{sFLAG}, 0", rd=[S(sFLAG)]),
          P.raw(f"s_cbranch_scc1 L_wait{hp}"),
          I(f"L_back{hp}:", "label", [], R(PART, 12)), kind="macro")
    accs = [BA, BA + 16, BB]
    first = [True] * 3
    for pair, src in ((1 - hp, PART), (hp, Q(L1))):
        for ks in range(3):
            for u in range(3):
                f = frag(vWO, (48 * pair + 16 * ks) * 192 + 64 * u, 8 * 192)
                p.add(P.mfma32(accs[u], f, src + 4 * ks, "0" if first[u] else accs[u]))
                first[u] = False
    for u in range(3):
        for y in range(2):
            d = OUT + 8 * u + 4 * y
            for i in range(4):
                p.add(cvt(d + i, accs[u] + 8 * y + 2 * i, accs[u] + 8 * y + 2 * i + 1))
            p.add(P.vst("buffer_store_dwordx4", d, 4, vXS, SRD_OUT, 64 * u + 32 * y))
    return p


def slow_path(e, hp):
    o = []
    o.append(f"L_wait{hp}:")
    o.append("    s_sleep 1")
    o.append(f"    ds_read_b32 {vr(vF)}, {vr(vFA)}")
    for j in range(3):
        off = 3072 * (1 - hp) + 1024 * j
        o.append(f"    ds_read_b128 {vr(PART+4*j,4)}, {vr(vEX)}" + (f" offset:{off}" if off else ""))
    o.append("    s_waitcnt lgkmcnt(0)")
    o.append(f"    v_readfirstlane_b32 s{sFLAG}, {vr(vF)}")
    o.append("    s_nop 1")
    o.append(f"    s_cmp_eq_u32 s{sFLAG}, 0")
    o.append(f"    s_cbranch_scc1 L_wait{hp}")
    o.append(f"    s_branch L_back{hp}")
    return o


NST = 16


def add_prof(out):
    res = []

    def stamp(k):
        res.append("    s_memrealtime s[30:31]")
        res.append("    s_waitcnt lgkmcnt(0)")
        res.append(f"    s_mov_b32 s{80+k}, s30")

    first_mfma = True
    seen_vm0 = True
    for idx, l in enumerate(out):
        t = l.strip()
        if t.startswith(";@"):
            stamp(int(t[2:]))
            continue
        if t.startswith("s_load_dwordx16"):
            res.append(l)
            res.append("    s_load_dwordx2 s[100:101], s[0:1], 64")
            for k in range(NST):
                res.append(f"    s_mov_b32 s{80+k}, 0")
            stamp(0)
            continue
        if t == "s_barrier":
            stamp(1)
            res.append(l)
            stamp(2)
            res.append("    s_memtime s[30:31]")
            res.append("    s_waitcnt lgkmcnt(0)")
            res.append("    s_mov_b32 s98, s30")
            first_mfma = True
            seen_vm0 = False
            continue
        if t.startswith("L_body1:"):
            first_mfma = True
            seen_vm0 = False
        if t.startswith("v_mfma") and first_mfma:
            stamp(3)
            first_mfma = False
        if t.startswith("s_waitcnt vmcnt(0)") and not seen_vm0:
            res.append(l)
            stamp(4)
            seen_vm0 = True
            continue
        if t.startswith("v_readfirstlane_b32 s70"):
            if not any(x.strip().startswith("L_wait") for x in out[max(0, idx - 8):idx]):
                stamp(5)
        if t.startswith("L_back"):
            res.append(l)
            stamp(6)
            continue
        if t == "s_endpgm":
            stamp(7)
            res.append("    s_memtime s[30:31]")
            res.append("    s_waitcnt lgkmcnt(0)")
            res.append("    s_sub_u32 s98, s30, s98")
            res.append("    s_waitcnt vmcnt(0)")
            stamp(8)
            res.append("    s_mov_b32 s24, s100")
            res.append("    s_mov_b32 s25, s101")
            res.append("    s_mov_b32 s26, 0x100000")
            res.append("    s_mov_b32 s27, 0x00020000")
            res.append("    s_lshl_b32 s28, s2, 3")
            res.append("    s_add_u32 s28, s28, s3")
            res.append("    s_lshl_b32 s28, s28, 7")
            res.append("    v_mov_b32 v10, 0")
            res.append("    s_mov_b64 exec, 1")
            res.append("    s_getreg_b32 s96, hwreg(HW_REG_XCC_ID)")
            res.append("    s_getreg_b32 s97, hwreg(HW_REG_HW_ID)")
            for k in range(19):
                res.append(f"    v_mov_b32 v11, s{80+k}")
                res.append(f"    buffer_store_dword v11, v10, s[24:27], s28 offen offset:{4*k}")
                res.append("    s_nop 1")
        res.append(l)
    return res


def main():
    out = []
    e = Emit()
    c = prologue_common(e)
    salu(e, f"s_cmp_eq_u32 s{sGRP}, 0")
    e.line("s_cbranch_scc0 L_pb")
    ea = e.fork()
    wdma(ea, c)
    xloads(ea, c)
    lane_consts(ea, c)
    ea.out.append(";@13")
    ea.wait(vm=12, lg=0)
    if OPT["prio_a"]:
        ea.line(f"s_setprio {OPT['prio_a']}")
    ea.line("s_branch L_join")
    eb = e.fork()
    eb.out.append("L_pb:")
    table_loads(eb, c)
    wdma(eb, c)
    na = 9
    if OPT["xb"] == "early":
        xloads(eb, c)
        na += 12
    lane_consts(eb, c)
    if OPT["xb"] == "mid":
        eb.wait(vm=na)
        xloads(eb, c)
        na = 12 + 9
    table_build(eb, c, na)
    eb.out.append(";@12")
    if OPT["xb"] == "late":
        xloads(eb, c)
    eb.out.append(";@13")
    eb.wait(vm=12, lg=0)
    if OPT["prio_b"]:
        eb.line(f"s_setprio {OPT['prio_b']}")
    out += e.out + ea.out + eb.out
    out.append("L_join:")
    out.append("    s_barrier")
    if "soloA" in OPT["exp"]:
        out.append(f"    s_cmp_eq_u32 s{sGRP}, 0")
        out.append("    s_cbranch_scc0 L_end")
    out.append(f"    s_cmp_eq_u32 s{sHP}, 0")
    out.append("    s_cbranch_scc0 L_body1")
    tail = []
    for hp in range(2):
        p = body(hp)
        order, est = schedule(p.nodes, OPT["mf_pipe"], OPT["vscale"], verbose=True)
        eh = Emit()
        eh.vm = [set(R(X(T, s), 4)) for s in range(6) for T in range(2)]
        eh.slot = 100
        if hp:
            eh.out.append("L_body1:")
        for nd in order:
            for i in nd.ins:
                eh.emit(i)
        eh.line("s_endpgm")
        out += eh.out
        tail += slow_path(eh, hp)
    out += tail
    out.append("L_end:")
    if OPT["prof"]:
        out = add_prof(out)

    hdr = open("standalone__window_attn_swin__vision.s.ref").read().split("\n")
    head = []
    for l in hdr:
        if l.startswith("; @launch"):
            l = f"; @launch grid=(256,1,1) block=(512,1,1) lds={LDS_SIZE}"
        head.append(l)
        if l.startswith("standalone__window_attn_swin__vision_kernel:"):
            break
    foot = hdr[hdr.index("s_endpgm"):]
    txt = "\n".join(head + out + foot)
    open(OPT["out"], "w").write(txt)


main()
```

```python
import json
def gen(name, bodyA, bodyB, prioA=0, prioB=0, iters=200):
    s = f"""; @launch grid=(1,1,1) block=(512,1,1) lds=0
.amdgcn_target "amdgcn-amd-amdhsa--gfx950"
.text
.globl {name}_kernel
.p2align 8
.type {name}_kernel,@function
{name}_kernel:
    s_load_dwordx2 s[6:7], s[0:1], 8       ; out
    s_waitcnt lgkmcnt(0)
    s_mov_b32 s12, s6
    s_mov_b32 s13, s7
    s_mov_b32 s14, 65536
    s_mov_b32 s15, 0x00020000
    v_lshrrev_b32 v1, 8, v0
    s_nop 1
    v_readfirstlane_b32 s21, v1
"""
    for i in range(2, 128):
        s += f"    v_mov_b32 v{i}, 1.0\n"
    s += f"""    s_mov_b32 s20, {iters}
    s_barrier
    s_memtime s[16:17]
    s_waitcnt lgkmcnt(0)
    s_cmp_eq_u32 s21, 0
    s_cbranch_scc0 L_B
    s_setprio {prioA}
L_loopA:
{bodyA}
    s_sub_u32 s20, s20, 1
    s_cmp_lg_u32 s20, 0
    s_cbranch_scc1 L_loopA
    s_branch L_done
L_B:
    s_setprio {prioB}
L_loopB:
{bodyB}
    s_sub_u32 s20, s20, 1
    s_cmp_lg_u32 s20, 0
    s_cbranch_scc1 L_loopB
L_done:
    s_nop 15
    s_memtime s[18:19]
    s_waitcnt lgkmcnt(0)
    s_sub_u32 s18, s18, s16
    v_mov_b32 v1, s18
    v_lshlrev_b32 v0, 2, v0
    buffer_store_dword v1, v0, s[12:15], 0 offen
    s_waitcnt vmcnt(0)
s_endpgm
.section .rodata,"a"
.p2align 6
.amdhsa_kernel {name}_kernel
  .amdhsa_next_free_vgpr 128
  .amdhsa_next_free_sgpr 32
  .amdhsa_accum_offset 128
  .amdhsa_group_segment_fixed_size 0
  .amdhsa_kernarg_size 16
  .amdhsa_user_sgpr_count 2
  .amdhsa_user_sgpr_kernarg_segment_ptr 1
  .amdhsa_system_sgpr_workgroup_id_x 1
.end_amdhsa_kernel
"""
    return s
def mf(n, nacc=4):
    return "".join(f"    v_mfma_f32_32x32x16_bf16 v[{64+16*(i%nacc)}:{79+16*(i%nacc)}], v[2:5], v[4:7], v[{64+16*(i%nacc)}:{79+16*(i%nacc)}]\n" for i in range(n))
def va(op, n):
    return "".join("    " + op.format(d=8 + i % 48) + "\n" for i in range(n))
cvt = "v_cvt_pk_bf16_f32 v{d}, v2, v3"
ex = "v_exp_f32 v{d}, v2"
add = "v_add_f32 v{d}, v2, v3"
def mfdep(n):
    s = ""
    for i in range(n):
        s += f"    v_mfma_f32_32x32x16_bf16 v[64:79], v[2:5], v[4:7], v[64:79]\n    s_nop 15\n s_nop 3\n    v_cvt_pk_bf16_f32 v8, v64, v65\n"
    return s
K = {
 "mf_cvt": (mf(16), va(cvt, 96), 0, 0),
 "cvt_mf": (va(cvt, 96), mf(16), 0, 0),
 "mf_cvt_pB": (mf(16), va(cvt, 96), 0, 1),
 "cvt_mf_pB": (va(cvt, 96), mf(16), 0, 1),
 "mf_exp": (mf(16), va(ex, 48), 0, 0),
 "exp_mf": (va(ex, 48), mf(16), 0, 0),
 "exp_mf_pB": (va(ex, 48), mf(16), 0, 1),
 "mf2_cvt": (mf(16, 2), va(cvt, 96), 0, 0),
 "cvt_mf2_pB": (va(cvt, 96), mf(16, 2), 0, 1),
 "mf1_cvt": (mf(16, 1), va(cvt, 96), 0, 0),
 "mf_mf": (mf(16), mf(16), 0, 0),
 "mf_add": (mf(16), va(add, 96), 0, 0),
 "mfdep_cvt": (mfdep(8), va(cvt, 96), 0, 0),
}
names = []
for n, (a, b, pa, pb) in K.items():
    nm = f"mb_{n}"
    open(f"mb4/{nm}.s", "w").write(gen(nm, a, b, pa, pb))
    names.append((nm, 1, 512))
json.dump(names, open("list.json", "w"))
```

```python
import json, re
from mb_gen4 import gen, mf, va, cvt, ex, add
def mixed(nv, op, nm=16):
    s = ""
    k = 0
    for i in range(nm):
        s += f"    v_mfma_f32_32x32x16_bf16 v[{64+16*(i%4)}:{79+16*(i%4)}], v[2:5], v[4:7], v[{64+16*(i%4)}:{79+16*(i%4)}]\n"
        for j in range(nv):
            s += "    " + op.format(d=8 + k % 48) + "\n"
            k += 1
    return s
K = {
 "mf_cvt": (mf(16), va(cvt, 96), 0, 0),
 "mf_exp": (mf(16), va(ex, 48), 0, 0),
 "mf_mf": (mf(16), mf(16), 0, 0),
 "mix3": (mixed(3, cvt, 8), mixed(3, cvt, 8), 0, 0),
 "mix5": (mixed(5, cvt, 8), mixed(5, cvt, 8), 0, 0),
}
names = []
for n, (a, b, pa, pb) in K.items():
    for grid in (1, 256):
        for rnd in (0, 1):
            nm = f"mb_{n}_g{grid}_r{rnd}"
            s = gen(nm, a, b, pa, pb, iters=200)
            s = s.replace("grid=(1,1,1)", f"grid=({grid},1,1)")
            if rnd:
                init = "    v_mul_u32_u24 v1, 0x9e37, v0\n"
                for i in range(2, 128):
                    init += f"    v_mul_u32_u24 v1, 0x{(0x3c6ef3 + 7919*i) & 0xffffff:x}, v1\n    v_xor_b32 v1, v1, v0\n    v_lshrrev_b32 v{i}, 3, v1\n    v_and_b32 v{i}, 0x3fff3fff, v{i}\n    v_or_b32 v{i}, 0x30003000, v{i}\n"
                s = re.sub(r"(    v_mov_b32 v\d+, 1\.0\n)+", init, s)
            open(f"mb5/{nm}.s", "w").write(s)
            names.append((nm, 1, 512))
json.dump(names, open("list.json", "w"))
```
